```python
import torch

def _softmax(x, axis=-1):
    return torch.softmax(x, dim=axis)
def _gelu(x):
    return torch.nn.functional.gelu(x, approximate="tanh")
def _silu(x):
    return torch.nn.functional.silu(x)
def _sigmoid(x):
    return torch.sigmoid(x)
def _layernorm(x, axis=-1, eps=1e-5):
    m = x.mean(dim=axis, keepdim=True)
    v = x.var(dim=axis, keepdim=True, unbiased=False)
    return (x - m) / torch.sqrt(v + eps)
def _scatter_add(tgt, idx, src, axis=0):
    return tgt.clone().index_add_(axis, idx, src)
def _segment_sum(src, seg, n):
    out = torch.zeros((n,) + src.shape[1:], dtype=src.dtype)
    return out.index_add_(0, seg, src)
def _pad(x, pw):
    flat = tuple(v for pair in reversed(pw) for v in pair)
    return torch.nn.functional.pad(x, flat)

kernel_name = 'parallel_sum__compressed_kv_cla__geglu_ffn__prompt'

def setup_inputs():

    _w = (lambda a: (lambda t: t.to(torch.bfloat16) if t.is_floating_point() else t)(torch.as_tensor(a)))
    def _A_setup():
        B, H, Sq, Sk, D, M = 1, 32, 2048, 2048, 128, 512
        Dc = 4 * D
        return {
            "x": _w((lambda *s: torch.randn(*s, dtype=torch.bfloat16) * 0.05)(B, Sq, M)),
            "c_kv": _w((lambda *s: torch.randn(*s, dtype=torch.bfloat16) * 1.6)(B, Sk, Dc)),
            "w_q": _w((lambda *s: torch.randn(*s, dtype=torch.bfloat16) * 0.8)(M, H, D) * (M ** -0.5)),
            "w_uk": _w((lambda *s: torch.randn(*s, dtype=torch.bfloat16) * 0.8)(Dc, H, D) * (Dc ** -0.5)),
            "w_uv": _w((lambda *s: torch.randn(*s, dtype=torch.bfloat16) * 1.6)(Dc, H, D) * (Dc ** -0.5)),
            "w_o": _w((lambda *s: torch.randn(*s, dtype=torch.bfloat16) * 1.6)(H, D, M) * ((H * D) ** -0.5)),
        }
    _A_in = _A_setup()

    def _B_setup():
        B, S, D, F = 1, 2048, 512, 1376
        return {
            "x": _w((lambda *s: torch.randn(*s, dtype=torch.bfloat16) * 0.05)(B, S, D)),
            "w_gate": _w((lambda *s: torch.randn(*s, dtype=torch.bfloat16) * 0.05)(D, F)),
            "w_up": _w((lambda *s: torch.randn(*s, dtype=torch.bfloat16) * 0.05)(D, F)),
            "w_down": _w((lambda *s: torch.randn(*s, dtype=torch.bfloat16) * 0.05)(F, D)),
        }
    _B_in = _B_setup()

    return {
        "A_x": _A_in["x"],
        "A_c_kv": _A_in["c_kv"],
        "A_w_q": _A_in["w_q"],
        "A_w_uk": _A_in["w_uk"],
        "A_w_uv": _A_in["w_uv"],
        "A_w_o": _A_in["w_o"],
        "B_x": _B_in["x"],
        "B_w_gate": _B_in["w_gate"],
        "B_w_up": _B_in["w_up"],
        "B_w_down": _B_in["w_down"],
    }

def reference(A_x, A_c_kv, A_w_q, A_w_uk, A_w_uv, A_w_o, B_x, B_w_gate, B_w_up, B_w_down):
    def _A_ref(x, c_kv, w_q, w_uk, w_uv, w_o):
        B, Sq, M = x.shape[0], x.shape[1], x.shape[2]
        Sk = c_kv.shape[1]
        H, D = w_q.shape[1], w_q.shape[2]
        q = torch.einsum("bqm,mhd->bhqd", x, w_q)
        k = torch.einsum("bkc,chd->bhkd", c_kv, w_uk)
        v = torch.einsum("bkc,chd->bhkd", c_kv, w_uv)
        scores = torch.einsum("bhqd,bhkd->bhqk", q, k) * (D ** -0.5)
        off = Sk - Sq
        qi = torch.arange(Sq)[:, None]
        kj = torch.arange(Sk)[None, :]
        cmask = kj <= (qi + off)
        scores = torch.where(cmask[None, None], scores, -1e9)
        p = _softmax(scores, axis=-1)
        ctx = torch.einsum("bhqk,bhkd->bhqd", p, v)
        return torch.einsum("bhqd,hdm->bqm", ctx, w_o)

    def _B_ref(x, w_gate, w_up, w_down):
        return (_gelu(x @ w_gate) * (x @ w_up)) @ w_down

    x = A_x
    xn = _layernorm(x, axis=-1)
    return x + _A_ref(xn, A_c_kv, A_w_q, A_w_uk, A_w_uv, A_w_o) + _B_ref(xn, B_w_gate, B_w_up, B_w_down)
```

```python
import re

TRANS = ("v_exp_f32", "v_log_f32", "v_rcp_f32", "v_rsq_f32", "v_sqrt_f32", "v_sin_f32", "v_cos_f32")
MAXH = 24


def regs_of(tok):
    tok = tok.strip()
    neg = tok.lstrip("-")
    if neg.startswith("abs(") and neg.endswith(")"):
        neg = neg[4:-1]
    if neg.startswith("|") and neg.endswith("|"):
        neg = neg[1:-1]
    m = re.fullmatch(r"([vas])(\d+)", neg)
    if m:
        return [m.group(1) + m.group(2)]
    m = re.fullmatch(r"([vas])\[(\d+):(\d+)\]", neg)
    if m:
        return [m.group(1) + str(i) for i in range(int(m.group(2)), int(m.group(3)) + 1)]
    if neg in ("vcc", "exec"):
        return [neg + "_lo", neg + "_hi"]
    if neg in ("m0", "vcc_lo", "vcc_hi", "exec_lo", "exec_hi"):
        return [neg]
    return []


class Ins:
    __slots__ = ("text", "op", "kind", "dst", "src", "srcC", "srcAB", "tok", "need", "wait_vm", "wait_lg", "nops",
                 "label", "target", "cmt", "uid", "data", "passes", "soft", "expect")
    _uid = 0

    def __init__(self, text, tok=None, need=None):
        Ins._uid += 1
        self.uid = Ins._uid
        self.text = text
        self.tok = tok
        self.need = list(need) if need else []
        self.wait_vm = None
        self.wait_lg = None
        self.nops = 0
        self.label = None
        self.target = None
        self.srcC = []
        self.srcAB = []
        self.data = []
        self.passes = 0
        self.soft = False
        self.expect = None
        self.parse()

    def parse(self):
        t = self.text.strip()
        self.dst, self.src = [], []
        if t.endswith(":"):
            self.op, self.kind, self.label = "label", "label", t[:-1]
            return
        if t.startswith(".") or t == "":
            self.op, self.kind = "dir", "dir"
            return
        parts = t.split(None, 1)
        op = parts[0]
        self.op = op
        rest = parts[1] if len(parts) > 1 else ""
        if op == "WAIT":
            self.kind = "waitpseudo"
            for x in rest.split(","):
                x = x.strip()
                if x:
                    r = regs_of(x)
                    if r:
                        self.src += r
                    else:
                        self.need.append(x)
            return
        ops, cur, depth = [], "", 0
        for ch in rest:
            if ch in "[(":
                depth += 1
            if ch in "])":
                depth -= 1
            if ch == "," and depth == 0:
                ops.append(cur.strip())
                cur = ""
            else:
                cur += ch
        if cur.strip():
            ops.append(cur.strip())
        mods = ""
        if ops:
            sp = ops[-1].split(None, 1)
            if len(sp) > 1 and not op.startswith("s_waitcnt"):
                ops[-1], mods = sp[0], sp[1]
        R = [regs_of(o) for o in ops]
        if op.startswith("v_mfma"):
            self.kind = "mfma"
            self.dst = R[0]
            self.srcAB = R[1] + R[2]
            self.srcC = R[3]
            self.src = self.srcAB + self.srcC
            self.passes = 8 if "32x32" in op else 4
        elif op.startswith("ds_read") or op.startswith("ds_bpermute") or op.startswith("ds_swizzle"):
            self.kind = "ds"
            self.dst = R[0]
            self.src = sum(R[1:], [])
        elif op.startswith("ds_write"):
            self.kind = "ds"
            self.src = sum(R, [])
            self.data = sum(R[1:], [])
        elif op.startswith("buffer_load") or op.startswith("global_load"):
            self.kind = "vm"
            if " lds" in " " + mods or "_lds_" in op:
                self.src = sum(R, []) + ["m0"]
                self.kind = "dma"
            else:
                self.dst = R[0]
                self.src = sum(R[1:], [])
        elif op.startswith("buffer_store") or op.startswith("global_store"):
            self.kind = "vm"
            self.src = sum(R, [])
            self.data = R[0] if op.startswith("buffer") else R[1]
        elif op.startswith("buffer_atomic") or op.startswith("global_atomic"):
            self.kind = "vm"
            self.src = sum(R, [])
            if "sc0" in mods:
                self.dst = R[0]
        elif op in ("buffer_wbl2", "buffer_inv"):
            self.kind = "vm"
        elif op.startswith("s_load") or op in ("s_memtime", "s_memrealtime"):
            self.kind = "smem"
            self.dst = R[0]
            self.src = sum(R[1:], [])
        elif op == "s_waitcnt":
            self.kind = "wait"
        elif op == "s_barrier":
            self.kind = "barrier"
        elif op == "s_nop":
            self.kind = "nop"
        elif op in ("s_endpgm",):
            self.kind = "end"
        elif op in ("s_setprio", "s_sleep"):
            self.kind = "salu"
        elif op.startswith("s_cbranch") or op == "s_branch":
            self.kind = "branch"
            self.target = ops[0]
            if "vcc" in op:
                self.src = ["vcc_lo", "vcc_hi"]
            if "exec" in op:
                self.src = ["exec_lo", "exec_hi"]
        elif op.startswith("s_cmp") or op.startswith("s_bitcmp"):
            self.kind = "salu"
            self.src = sum(R, [])
        elif op.startswith("s_"):
            self.kind = "salu"
            self.dst = list(R[0])
            self.src = sum(R[1:], [])
            if "saveexec" in op:
                self.dst += ["exec_lo", "exec_hi"]
                self.src += ["exec_lo", "exec_hi"]
            if op in ("s_addk_i32", "s_mulk_i32", "s_cmov_b32", "s_bitset1_b32", "s_bitset0_b32"):
                self.src += R[0]
        elif op.startswith("v_"):
            self.kind = "valu"
            if op.startswith("v_permlane") and "swap" in op:
                self.dst = R[0] + R[1]
                self.src = R[0] + R[1]
            elif op.startswith("v_cmp"):
                self.dst = R[0]
                self.src = sum(R[1:], [])
            elif op.startswith("v_add_co") or op.startswith("v_sub_co") or op.startswith("v_addc_co") or op.startswith("v_subb_co"):
                self.dst = R[0] + R[1]
                self.src = sum(R[2:], [])
            else:
                self.dst = R[0]
                self.src = sum(R[1:], [])
                if op.startswith("v_fmac") or op.startswith("v_pk_fmac") or op.startswith("v_dot2c") or op.startswith("v_writelane") or "_dpp" in op:
                    self.src = self.src + R[0]
        else:
            raise ValueError("unknown op " + t)
        self.src = list(dict.fromkeys(self.src))

    @property
    def is_dpp(self):
        return "_dpp" in self.op

    @property
    def is_trans(self):
        return any(self.op.startswith(x) for x in TRANS)


def need_states(p, c):
    n = 0
    pd = set(p.dst)
    if p.kind == "valu":
        vg = {r for r in pd if r[0] in "va" and not r.startswith("vcc")}
        sg = pd - vg
        if vg:
            if c.kind == "mfma" and vg & set(c.src):
                n = max(n, 2)
            if c.kind == "valu":
                hit = vg & set(c.src)
                if hit:
                    if c.op.startswith("v_permlane") or c.is_dpp:
                        n = max(n, 2)
                    if c.op.startswith("v_readlane") or c.op.startswith("v_readfirstlane"):
                        n = max(n, 1)
                    if p.is_trans and not c.is_trans:
                        n = max(n, 1)
            if p.is_trans and c.kind in ("vm", "ds", "dma") and vg & set(c.src):
                n = max(n, 1)
        if sg:
            hit = sg & set(c.src)
            if hit:
                if c.kind in ("vm", "dma"):
                    n = max(n, 5)
                elif c.kind == "valu":
                    n = max(n, 4 if ("lane" in c.op) else 2)
                elif c.kind in ("salu", "branch"):
                    n = max(n, 2)
    elif p.kind == "mfma":
        big = p.passes == 8
        if c.kind == "mfma":
            if pd & set(c.srcAB):
                n = max(n, 12 if big else 8)
            if pd & set(c.srcC):
                if not (c.srcC == p.dst and c.passes == p.passes):
                    n = max(n, 10 if big else 6)
        else:
            if pd & (set(c.src) | set(c.dst)):
                n = max(n, 12 if big else 8)
            if c.kind == "valu" and set(p.srcC) & set(c.dst):
                n = max(n, 7 if big else 3)
    elif p.kind == "salu":
        if "m0" in pd and c.kind == "dma":
            n = max(n, 1)
    elif p.kind in ("vm",):
        if len(p.data) >= 3 and set(p.data) & set(c.dst):
            n = max(n, 2 if c.kind == "valu" else 1)
    return n


class Prog:
    def __init__(self):
        self.ins = []
        self.nop_report = 0

    def I(self, text, tok=None, need=None):
        for line in text.split("\n"):
            line = line.strip()
            if not line:
                continue
            self.ins.append(Ins(line, tok, need))
        return self

    def add(self, x):
        if isinstance(x, Ins):
            self.ins.append(x)
        elif isinstance(x, str):
            self.I(x)
        else:
            for y in x:
                self.add(y)

    def label(self, name):
        self.I(name + ":")

    def finalize(self):
        ins = self.ins
        n = len(ins)
        labels = {x.label: i for i, x in enumerate(ins) if x.kind == "label"}
        succ = []
        for i, x in enumerate(ins):
            s = []
            if x.kind == "end":
                pass
            elif x.kind == "branch":
                s.append(labels[x.target])
                if x.op != "s_branch":
                    s.append(i + 1)
            else:
                if i + 1 < n:
                    s.append(i + 1)
            succ.append(s)
        leaders = {0}
        for i, x in enumerate(ins):
            if x.kind == "label":
                leaders.add(i)
            if x.kind in ("branch", "end") and i + 1 < n:
                leaders.add(i + 1)
        leaders = sorted(leaders)
        blocks = {}
        for a, b in zip(leaders, leaders[1:] + [n]):
            blocks[a] = (a, b)

        def merge(s1, s2):
            if s1 is None:
                return s2
            lg, vm, sm, hist = s1
            lg2, vm2, sm2, hist2 = s2
            out = []
            for d1, d2 in ((lg, lg2), (vm, vm2), (hist, hist2)):
                d = dict(d1)
                for k, v in d2.items():
                    d[k] = min(d[k], v) if k in d else v
                out.append(d)
            return (out[0], out[1], sm | sm2, out[2])

        byuid = {x.uid: x for x in ins}

        def step(x, st, update):
            lg, vm, sm, hist = st
            changed = False
            if x.kind in ("label", "dir"):
                return st, False
            touched = list(x.src) + list(x.dst) + list(x.need)
            if x.kind == "dma" or x.kind == "vm":
                pass
            wl, wv = None, None
            for r in touched:
                if r in lg:
                    wl = lg[r] if wl is None else min(wl, lg[r])
                if r in sm:
                    wl = 0
                if r in vm:
                    wv = vm[r] if wv is None else min(wv, vm[r])
            if wl is not None and sm:
                wl = 0
            if update:
                if wl is not None:
                    wl = min(wl, 15)
                    if x.wait_lg is None or wl < x.wait_lg:
                        x.wait_lg = wl
                        changed = True
                if wv is not None:
                    wv = min(wv, 63)
                    if x.wait_vm is None or wv < x.wait_vm:
                        x.wait_vm = wv
                        changed = True
            el, ev = x.wait_lg, x.wait_vm
            if x.kind == "wait":
                m = re.search(r"lgkmcnt\((\d+)\)", x.text)
                if m:
                    el = int(m.group(1)) if el is None else min(el, int(m.group(1)))
                m = re.search(r"vmcnt\((\d+)\)", x.text)
                if m:
                    ev = int(m.group(1)) if ev is None else min(ev, int(m.group(1)))
            if el is not None:
                if el == 0:
                    lg, sm = {}, frozenset()
                elif not sm:
                    lg = {k: v for k, v in lg.items() if v < el}
            if ev is not None:
                vm = {k: v for k, v in vm.items() if v < ev}
            pre = 1 if (x.kind != "wait" and (x.wait_lg is not None or x.wait_vm is not None)) else 0
            if x.kind == "waitpseudo":
                if pre:
                    hist = {k: v + 1 for k, v in hist.items() if v + 1 < MAXH}
                return (lg, vm, sm, hist), changed
            req = 0
            for uid, age in hist.items():
                k = need_states(byuid[uid], x)
                if k > age + pre:
                    req = max(req, k - age - pre)
            if update and req > x.nops:
                x.nops = req
                changed = True
            adv = pre + x.nops + 1
            if x.kind == "nop":
                adv += int(x.text.split()[1], 0)
            hist = {k: v + adv for k, v in hist.items() if v + adv < MAXH}
            if x.kind in ("valu", "mfma", "salu", "vm"):
                hist[x.uid] = 0
            if x.kind == "ds":
                lg = {k: v + 1 for k, v in lg.items()}
                for r in x.dst:
                    lg[r] = 0
                if x.tok:
                    lg[x.tok] = 0
            elif x.kind == "smem":
                lg = {k: v + 1 for k, v in lg.items()}
                sm = sm | frozenset(x.dst) | frozenset(["smem"])
            elif x.kind in ("vm", "dma"):
                vm = {k: v + 1 for k, v in vm.items()}
                for r in x.dst:
                    vm[r] = 0
                if x.tok:
                    vm[x.tok] = 0
            return (lg, vm, sm, hist), changed

        for it in range(50):
            instate = {0: ({}, {}, frozenset(), {})}
            work = [0]
            guard = 0
            while work:
                guard += 1
                assert guard < 20000, "no convergence"
                b = work.pop(0)
                a, e = blocks[b]
                st = instate[b]
                for i in range(a, e):
                    st, _ = step(ins[i], st, False)
                for s in succ[e - 1]:
                    old = instate.get(s)
                    new = merge(old, st)
                    if old is None or new != old:
                        instate[s] = new
                        if s not in work:
                            work.append(s)
            anych = False
            for b, (a, e) in blocks.items():
                if b not in instate:
                    continue
                st = instate[b]
                for i in range(a, e):
                    st, ch = step(ins[i], st, True)
                    anych |= ch
            if not anych:
                break
        else:
            raise RuntimeError("finalize did not converge")
        last = {}
        for x in ins:
            if x.expect:
                for r, uid in x.expect.items():
                    assert last.get(r) == uid, f"register {r} was rewritten before: {x.text}"
            for r in x.dst:
                last[r] = x.uid
        out = []
        self.nop_report = 0
        self.nop_sites = []
        self.nwait = 0
        for x in ins:
            w = []
            if x.kind != "wait":
                if x.wait_vm is not None:
                    w.append("vmcnt(%d)" % x.wait_vm)
                if x.wait_lg is not None:
                    w.append("lgkmcnt(%d)" % x.wait_lg)
                if w:
                    out.append("s_waitcnt " + " ".join(w))
                    self.nwait += 1
            if x.nops:
                k = x.nops
                self.nop_report += k
                self.nop_sites.append((len(out), k, x.text))
                while k > 0:
                    out.append("s_nop %d" % (min(k, 16) - 1))
                    k -= 16
            if x.kind == "waitpseudo":
                continue
            out.append(x.text)
        return "\n".join(out) + "\n"


def interleave(mfmas, gaps):
    out = []
    for f in gaps.get(-1, []):
        out.append(f)
    for i, m in enumerate(mfmas):
        out.append(m)
        for f in gaps.get(i, []):
            out.append(f)
    extra = sorted(k for k in gaps if k >= len(mfmas))
    for k in extra:
        out += gaps[k]
    return out


class Gaps:
    def __init__(self, n, cap=2):
        self.n = n
        self.g = {}
        self.used = [0] * n
        self.cap = cap
        self.over = 0

    @staticmethod
    def cost(x):
        t = x.text if isinstance(x, Ins) else x
        op = t.split()[0]
        if op == "WAIT":
            return 1
        if any(op.startswith(y) for y in TRANS):
            return 2
        return 1

    def put(self, i, x, front=False):
        lst = self.g.setdefault(i, [])
        if front:
            lst.insert(0, x)
        else:
            lst.append(x)
        if 0 <= i < self.n:
            self.used[i] += self.cost(x)

    def place(self, x, lo, hi=None):
        hi = self.n - 1 if hi is None else min(hi, self.n - 1)
        c = self.cost(x)
        for i in range(max(lo, 0), hi + 1):
            if self.used[i] + c <= self.cap:
                self.put(i, x)
                return i
        if lo > hi:
            self.put(self.n, x)
            self.over += c
            return self.n
        i = min(range(max(lo, 0), hi + 1), key=lambda j: self.used[j])
        self.put(i, x)
        self.over += c
        return i

    def stream(self, xs, lo, hi=None, spread=False):
        hi = self.n - 1 if hi is None else hi
        pos = lo
        m = len(xs)
        for k, x in enumerate(xs):
            want = pos
            if spread:
                want = max(pos, lo + (k * (hi - lo + 1)) // max(m, 1))
            c = self.cost(x)
            i = want
            while i <= hi and self.used[i] + c > self.cap:
                i += 1
            if i > hi:
                i = max(pos, hi) if pos <= self.n else self.n
                self.over += c
            self.put(i, x)
            pos = i
        return pos


def bind(group):
    last = {}
    for x in group:
        e = {r: last[r] for r in x.src if r in last}
        if e:
            x.expect = e
        for r in x.dst:
            last[r] = x.uid
    return group
```

```python
from asmgen import Prog, Ins, Gaps, interleave, bind

KB = 1024
MB = 1024 * 1024
WS_XN = 0
WS_XN_SZ = 2 * MB
WS_KV = 2 * MB
WS_KV_SZ = 32 * MB
WS_CTX = 34 * MB
WS_CTX_SZ = 16 * MB
WS_H = 50 * MB
H_TILES = 88
WS_H_SZ = 128 * H_TILES * 512
WS_STAMP = 60 * MB

QK_SCALE = '0x3e0293ee'
ARG = dict(x=0, ckv=8, wq=16, wuk=24, wuv=32, wo=40, bx=48, wg=56, wu=64, wd=72, out=80, dbg=88, ws=96)


def vr(b, n=4):
    return f"v[{b}:{b + n - 1}]" if n > 1 else f"v{b}"


def ar(b, n=4):
    return f"a[{b}:{b + n - 1}]" if n > 1 else f"a{b}"


def sr(b, n=4):
    return f"s[{b}:{b + n - 1}]" if n > 1 else f"s{b}"


def mfma(d, a, b, c):
    return Ins(f"v_mfma_f32_16x16x32_bf16 {d}, {a}, {b}, {c}")


def srd(p, dst, ptr, size, off=0):
    if off:
        p.I(f"s_add_u32 s{dst}, s{ptr}, {hex(off)}\ns_addc_u32 s{dst + 1}, s{ptr + 1}, 0")
    else:
        p.I(f"s_mov_b32 s{dst}, s{ptr}\ns_mov_b32 s{dst + 1}, s{ptr + 1}")
    p.I(f"s_mov_b32 s{dst + 2}, {hex(size)}\ns_mov_b32 s{dst + 3}, 0x20000")


def kd(name, vgpr=512, sgpr=96, accum=256):
    return f""".section .rodata,"a"
.p2align 6
.amdhsa_kernel {name}
  .amdhsa_next_free_vgpr {vgpr}
  .amdhsa_next_free_sgpr {sgpr}
  .amdhsa_accum_offset {accum}
  .amdhsa_group_segment_fixed_size 0
  .amdhsa_kernarg_size 104
  .amdhsa_user_sgpr_count 2
  .amdhsa_user_sgpr_kernarg_segment_ptr 1
  .amdhsa_system_sgpr_workgroup_id_x 1
  .amdhsa_float_denorm_mode_32 3
.end_amdhsa_kernel
.text
"""


def head(name):
    return f".globl {name}\n.p2align 8\n.type {name},@function\n{name}:\n"


def wave_id(p, sdst, vtmp):
    p.I(f"v_lshrrev_b32 v{vtmp}, 6, v0\nv_readfirstlane_b32 s{sdst}, v{vtmp}")


def stamp(p, idx, on, s0=84):
    if on:
        p.I(f"s_memrealtime s[{s0}:{s0+1}]\ns_memtime s[{s0+2}:{s0+3}]\ns_waitcnt lgkmcnt(0)")
        p.I(f"v_writelane_b32 v{STAMP_V}, s{s0}, {2*idx}\nv_writelane_b32 v{STAMP_V}, s{s0+2}, {2*idx+1}")


STAMP_V = 7


def stamp_flush(p, on, kidx, srd_tmp, ws_ptr, wave_s, s0=84):
    if on:
        srd(p, srd_tmp, ws_ptr, 1 * MB, WS_STAMP + kidx * 256 * KB)
        p.I(f"s_lshl_b32 s{s0}, s2, 2\ns_add_u32 s{s0}, s{s0}, s{wave_s}\ns_lshl_b32 s{s0}, s{s0}, 8")
        p.I(f"v_and_b32 v6, 63, v0\nv_lshlrev_b32 v6, 2, v6")
        p.I(f"buffer_store_dword v{STAMP_V}, v6, {sr(srd_tmp)}, s{s0} offen")
```

```python
import sys, importlib
from common import *
HDR = open("parallel_sum__compressed_kv_cla__geglu_ffn__prompt.s.ref").read().split("; Override launch geometry")[0]
def build(kernels, stamps=False, **kw):
    launches, bodies = [], []
    for k in kernels:
        m = importlib.import_module(k)
        t, info = m.build(stamps=stamps, **kw.get(k, {}))
        launches.append(f"; @launch kernel={k}_kernel grid=(256,1,1) block=(256,1,1) lds=163840")
        bodies.append(t)
        print(k, "nops", info["nops"], "over", info["over"], "waits", info["nwait"], "bytes", len(t), file=sys.stderr)
    return HDR + "\n".join(launches) + '\n.amdgcn_target "amdgcn-amd-amdhsa--gfx950"\n.text\n' + "".join(bodies)
if __name__ == "__main__":
    out = sys.argv[1]
    stamps = "--stamps" in sys.argv
    ks = [a for a in sys.argv[2:] if not a.startswith("--")]
    open(out, "w").write(build(ks, stamps))
```

```python
from asmgen import Prog, Ins, Gaps, interleave, bind

KB = 1024
MB = 1024 * 1024
WS_XN = 0
WS_XN_SZ = 2 * MB
WS_KV = 2 * MB
WS_KV_SZ = 32 * MB
WS_CTX = 34 * MB
WS_CTX_SZ = 16 * MB
WS_H = 50 * MB
H_TILES = 88
WS_H_SZ = 128 * H_TILES * 512
WS_STAMP = 60 * MB

QK_SCALE = '0x3e0293ee'
ARG = dict(x=0, ckv=8, wq=16, wuk=24, wuv=32, wo=40, bx=48, wg=56, wu=64, wd=72, out=80, dbg=88, ws=96)


def vr(b, n=4):
    return f"v[{b}:{b + n - 1}]" if n > 1 else f"v{b}"


def ar(b, n=4):
    return f"a[{b}:{b + n - 1}]" if n > 1 else f"a{b}"


def sr(b, n=4):
    return f"s[{b}:{b + n - 1}]" if n > 1 else f"s{b}"


def mfma(d, a, b, c):
    return Ins(f"v_mfma_f32_16x16x32_bf16 {d}, {a}, {b}, {c}")


def srd(p, dst, ptr, size, off=0):
    if off:
        p.I(f"s_add_u32 s{dst}, s{ptr}, {hex(off)}\ns_addc_u32 s{dst + 1}, s{ptr + 1}, 0")
    else:
        p.I(f"s_mov_b32 s{dst}, s{ptr}\ns_mov_b32 s{dst + 1}, s{ptr + 1}")
    p.I(f"s_mov_b32 s{dst + 2}, {hex(size)}\ns_mov_b32 s{dst + 3}, 0x20000")


def kd(name, vgpr=512, sgpr=96, accum=256):
    return f""".section .rodata,"a"
.p2align 6
.amdhsa_kernel {name}
  .amdhsa_next_free_vgpr {vgpr}
  .amdhsa_next_free_sgpr {sgpr}
  .amdhsa_accum_offset {accum}
  .amdhsa_group_segment_fixed_size 0
  .amdhsa_kernarg_size 104
  .amdhsa_user_sgpr_count 2
  .amdhsa_user_sgpr_kernarg_segment_ptr 1
  .amdhsa_system_sgpr_workgroup_id_x 1
  .amdhsa_float_denorm_mode_32 3
.end_amdhsa_kernel
.text
"""


def head(name):
    return f".globl {name}\n.p2align 8\n.type {name},@function\n{name}:\n"


def wave_id(p, sdst, vtmp):
    p.I(f"v_lshrrev_b32 v{vtmp}, 6, v0\nv_readfirstlane_b32 s{sdst}, v{vtmp}")


DBG_MODE = {}


def stamp(p, idx, on, s0=84):
    if on == "dbg":
        k, slots = DBG_MODE["k"], DBG_MODE["slots"]
        if idx not in slots:
            return
        slot, neg = slots[idx]
        p.I(f"s_memrealtime s[{s0}:{s0+1}]\ns_load_dwordx2 s[88:89], s[0:1], 88\ns_waitcnt lgkmcnt(0)")
        if neg:
            p.I(f"s_not_b32 s{s0}, s{s0}")
        p.I(f"s_add_u32 s88, s88, {512 * (DBG_MODE['n'] - 1 - k)}\ns_addc_u32 s89, s89, 0\ns_mov_b32 s90, 64\ns_mov_b32 s91, 0x20000")
        p.I(f"v_readfirstlane_b32 s92, v0\ns_and_b32 s93, s2, 0xf8\ns_or_b32 s92, s92, s93\ns_cmp_eq_u32 s92, 0\ns_cselect_b32 s92, {4 * slot}, 0x1000")
        p.I(f"v_mov_b32 v{STAMP_V}, s{s0}\nv_mov_b32 v6, s92\ns_mov_b64 s[92:93], exec\ns_mov_b64 exec, 1")
        p.I(f"buffer_atomic_umax v{STAMP_V}, v6, s[88:91], 0 offen\ns_mov_b64 exec, s[92:93]")
        return
    if on:
        p.I(f"s_memrealtime s[{s0}:{s0+1}]\ns_memtime s[{s0+2}:{s0+3}]\ns_waitcnt lgkmcnt(0)")
        p.I(f"v_writelane_b32 v{STAMP_V}, s{s0}, {2*idx}\nv_writelane_b32 v{STAMP_V}, s{s0+2}, {2*idx+1}")


STAMP_V = 7


def stamp_flush(p, on, kidx, srd_tmp, ws_ptr, wave_s, s0=84):
    if on and on != "dbg":
        srd(p, srd_tmp, ws_ptr, 1 * MB, WS_STAMP + kidx * 256 * KB)
        p.I(f"s_lshl_b32 s{s0}, s2, 2\ns_add_u32 s{s0}, s{s0}, s{wave_s}\ns_lshl_b32 s{s0}, s{s0}, 8")
        p.I(f"v_and_b32 v6, 63, v0\nv_lshlrev_b32 v6, 2, v6")
        p.I(f"buffer_store_dword v{STAMP_V}, v6, {sr(srd_tmp)}, s{s0} offen")
```

```python
import sys, importlib
from common import *
HDR = open("parallel_sum__compressed_kv_cla__geglu_ffn__prompt.s.ref").read().split("; Override launch geometry")[0]
def build(kernels, stamps=False, **kw):
    launches, bodies = [], []
    for k in kernels:
        m = importlib.import_module(k)
        if stamps == "dbg":
            import common
            common.DBG_MODE["k"] = len(bodies); common.DBG_MODE["n"] = len(kernels)
            common.DBG_MODE["slots"] = {"k1": {0: (0, 1), 1: (1, 0), 2: (2, 0), 3: (3, 0)}, "k2": {0: (4, 1), 1: (5, 0), 2: (6, 0), 4: (7, 0), 5: (8, 0), 6: (9, 0)},
                                        "k3": {0: (10, 1), 1: (11, 0), 2: (12, 0), 3: (13, 0)}}[k]
        t, info = m.build(stamps=stamps, **kw.get(k, {}))
        launches.append(f"; @launch kernel={k}_kernel grid=(256,1,1) block=(256,1,1) lds=163840")
        bodies.append(t)
        print(k, "nops", info["nops"], "over", info["over"], "waits", info["nwait"], "bytes", len(t), file=sys.stderr)
    return HDR + "\n".join(launches) + '\n.amdgcn_target "amdgcn-amd-amdhsa--gfx950"\n.text\n' + "".join(bodies)
if __name__ == "__main__":
    out = sys.argv[1]
    stamps = "dbg" if "--dbg" in sys.argv else "--stamps" in sys.argv
    ks = [a for a in sys.argv[2:] if not a.startswith("--")]
    open(out, "w").write(build(ks, stamps))
```

```python
import re

TRANS = ("v_exp_f32", "v_log_f32", "v_rcp_f32", "v_rsq_f32", "v_sqrt_f32", "v_sin_f32", "v_cos_f32")
MAXH = 24


def regs_of(tok):
    tok = tok.strip()
    neg = tok.lstrip("-")
    if neg.startswith("abs(") and neg.endswith(")"):
        neg = neg[4:-1]
    if neg.startswith("|") and neg.endswith("|"):
        neg = neg[1:-1]
    m = re.fullmatch(r"([vas])(\d+)", neg)
    if m:
        return [m.group(1) + m.group(2)]
    m = re.fullmatch(r"([vas])\[(\d+):(\d+)\]", neg)
    if m:
        return [m.group(1) + str(i) for i in range(int(m.group(2)), int(m.group(3)) + 1)]
    if neg in ("vcc", "exec"):
        return [neg + "_lo", neg + "_hi"]
    if neg in ("m0", "vcc_lo", "vcc_hi", "exec_lo", "exec_hi"):
        return [neg]
    return []


class Ins:
    __slots__ = ("text", "op", "kind", "dst", "src", "srcC", "srcAB", "tok", "need", "wait_vm", "wait_lg", "nops",
                 "label", "target", "cmt", "uid", "data", "passes", "soft", "expect")
    _uid = 0

    def __init__(self, text, tok=None, need=None):
        Ins._uid += 1
        self.uid = Ins._uid
        self.text = text
        self.tok = tok
        self.need = list(need) if need else []
        self.wait_vm = None
        self.wait_lg = None
        self.nops = 0
        self.label = None
        self.target = None
        self.srcC = []
        self.srcAB = []
        self.data = []
        self.passes = 0
        self.soft = False
        self.expect = None
        self.parse()

    def parse(self):
        t = self.text.strip()
        self.dst, self.src = [], []
        if t.endswith(":"):
            self.op, self.kind, self.label = "label", "label", t[:-1]
            return
        if t.startswith(".") or t == "":
            self.op, self.kind = "dir", "dir"
            return
        parts = t.split(None, 1)
        op = parts[0]
        self.op = op
        rest = parts[1] if len(parts) > 1 else ""
        if op == "WAIT":
            self.kind = "waitpseudo"
            for x in rest.split(","):
                x = x.strip()
                if x:
                    r = regs_of(x)
                    if r:
                        self.src += r
                    else:
                        self.need.append(x)
            return
        ops, cur, depth = [], "", 0
        for ch in rest:
            if ch in "[(":
                depth += 1
            if ch in "])":
                depth -= 1
            if ch == "," and depth == 0:
                ops.append(cur.strip())
                cur = ""
            else:
                cur += ch
        if cur.strip():
            ops.append(cur.strip())
        mods = ""
        if ops:
            sp = ops[-1].split(None, 1)
            if len(sp) > 1 and not op.startswith("s_waitcnt"):
                ops[-1], mods = sp[0], sp[1]
        R = [regs_of(o) for o in ops]
        if op.startswith("v_mfma"):
            self.kind = "mfma"
            self.dst = R[0]
            self.srcAB = R[1] + R[2]
            self.srcC = R[3]
            self.src = self.srcAB + self.srcC
            self.passes = 8 if "32x32" in op else 4
        elif op.startswith("ds_read") or op.startswith("ds_bpermute") or op.startswith("ds_swizzle"):
            self.kind = "ds"
            self.dst = R[0]
            self.src = sum(R[1:], [])
        elif op.startswith("ds_write"):
            self.kind = "ds"
            self.src = sum(R, [])
            self.data = sum(R[1:], [])
        elif op.startswith("buffer_load") or op.startswith("global_load"):
            self.kind = "vm"
            if " lds" in " " + mods or "_lds_" in op:
                self.src = sum(R, []) + ["m0"]
                self.kind = "dma"
            else:
                self.dst = R[0]
                self.src = sum(R[1:], [])
        elif op.startswith("buffer_store") or op.startswith("global_store"):
            self.kind = "vm"
            self.src = sum(R, [])
            self.data = R[0] if op.startswith("buffer") else R[1]
        elif op.startswith("buffer_atomic") or op.startswith("global_atomic"):
            self.kind = "vm"
            self.src = sum(R, [])
            if "sc0" in mods:
                self.dst = R[0]
        elif op in ("buffer_wbl2", "buffer_inv"):
            self.kind = "vm"
        elif op.startswith("s_load") or op in ("s_memtime", "s_memrealtime"):
            self.kind = "smem"
            self.dst = R[0]
            self.src = sum(R[1:], [])
        elif op == "s_waitcnt":
            self.kind = "wait"
        elif op == "s_barrier":
            self.kind = "barrier"
        elif op == "s_nop":
            self.kind = "nop"
        elif op in ("s_endpgm",):
            self.kind = "end"
        elif op in ("s_setprio", "s_sleep"):
            self.kind = "salu"
        elif op.startswith("s_cbranch") or op == "s_branch":
            self.kind = "branch"
            self.target = ops[0]
            if "vcc" in op:
                self.src = ["vcc_lo", "vcc_hi"]
            if "exec" in op:
                self.src = ["exec_lo", "exec_hi"]
        elif op.startswith("s_cmp") or op.startswith("s_bitcmp"):
            self.kind = "salu"
            self.src = sum(R, [])
        elif op.startswith("s_"):
            self.kind = "salu"
            self.dst = list(R[0])
            self.src = sum(R[1:], [])
            if "saveexec" in op:
                self.dst += ["exec_lo", "exec_hi"]
                self.src += ["exec_lo", "exec_hi"]
            if op in ("s_addk_i32", "s_mulk_i32", "s_cmov_b32", "s_bitset1_b32", "s_bitset0_b32"):
                self.src += R[0]
        elif op.startswith("v_"):
            self.kind = "valu"
            if op.startswith("v_permlane") and "swap" in op:
                self.dst = R[0] + R[1]
                self.src = R[0] + R[1]
            elif op.startswith("v_cmp"):
                self.dst = R[0]
                self.src = sum(R[1:], [])
            elif op.startswith("v_add_co") or op.startswith("v_sub_co") or op.startswith("v_addc_co") or op.startswith("v_subb_co"):
                self.dst = R[0] + R[1]
                self.src = sum(R[2:], [])
            else:
                self.dst = R[0]
                self.src = sum(R[1:], [])
                if op.startswith("v_fmac") or op.startswith("v_pk_fmac") or op.startswith("v_dot2c") or op.startswith("v_writelane") or "_dpp" in op:
                    self.src = self.src + R[0]
        else:
            raise ValueError("unknown op " + t)
        if self.kind in ("salu", "branch"):
            if op.startswith(("s_addc", "s_subb", "s_cselect", "s_cbranch_scc", "s_cmov")):
                self.src.append("scc")
            if self.kind == "salu" and not op.startswith(("s_mov", "s_cselect", "s_mul", "s_setprio", "s_sleep", "s_cmov", "s_bitset")):
                self.dst.append("scc")
        self.src = list(dict.fromkeys(self.src))

    @property
    def is_dpp(self):
        return "_dpp" in self.op

    @property
    def is_trans(self):
        return any(self.op.startswith(x) for x in TRANS)


def need_states(p, c):
    n = 0
    pd = set(p.dst)
    if p.kind == "valu":
        vg = {r for r in pd if r[0] in "va" and not r.startswith("vcc")}
        sg = pd - vg
        if vg:
            if c.kind == "mfma" and vg & set(c.src):
                n = max(n, 2)
            if c.kind == "valu":
                hit = vg & set(c.src)
                if hit:
                    if c.op.startswith("v_permlane") or c.is_dpp:
                        n = max(n, 2)
                    if c.op.startswith("v_readlane") or c.op.startswith("v_readfirstlane"):
                        n = max(n, 1)
                    if p.is_trans and not c.is_trans:
                        n = max(n, 1)
            if p.is_trans and c.kind in ("vm", "ds", "dma") and vg & set(c.src):
                n = max(n, 1)
        if sg:
            hit = sg & set(c.src)
            if hit:
                if c.kind in ("vm", "dma"):
                    n = max(n, 5)
                elif c.kind == "valu":
                    n = max(n, 4 if ("lane" in c.op) else 2)
                elif c.kind in ("salu", "branch"):
                    n = max(n, 2)
    elif p.kind == "mfma":
        big = p.passes == 8
        if c.kind == "mfma":
            if pd & set(c.srcAB):
                n = max(n, 12 if big else 8)
            if pd & set(c.srcC):
                if not (c.srcC == p.dst and c.passes == p.passes):
                    n = max(n, 10 if big else 6)
        else:
            if pd & (set(c.src) | set(c.dst)):
                n = max(n, 12 if big else 8)
            if c.kind == "valu" and set(p.srcC) & set(c.dst):
                n = max(n, 7 if big else 3)
    elif p.kind == "salu":
        if "m0" in pd and c.kind == "dma":
            n = max(n, 1)
    elif p.kind in ("vm",):
        if len(p.data) >= 3 and set(p.data) & set(c.dst):
            n = max(n, 2 if c.kind == "valu" else 1)
    return n


class Prog:
    def __init__(self):
        self.ins = []
        self.nop_report = 0

    def I(self, text, tok=None, need=None):
        for line in text.split("\n"):
            line = line.strip()
            if not line:
                continue
            self.ins.append(Ins(line, tok, need))
        return self

    def add(self, x):
        if isinstance(x, Ins):
            self.ins.append(x)
        elif isinstance(x, str):
            self.I(x)
        else:
            for y in x:
                self.add(y)

    def label(self, name):
        self.I(name + ":")

    def finalize(self):
        ins = self.ins
        n = len(ins)
        labels = {x.label: i for i, x in enumerate(ins) if x.kind == "label"}
        succ = []
        for i, x in enumerate(ins):
            s = []
            if x.kind == "end":
                pass
            elif x.kind == "branch":
                s.append(labels[x.target])
                if x.op != "s_branch":
                    s.append(i + 1)
            else:
                if i + 1 < n:
                    s.append(i + 1)
            succ.append(s)
        leaders = {0}
        for i, x in enumerate(ins):
            if x.kind == "label":
                leaders.add(i)
            if x.kind in ("branch", "end") and i + 1 < n:
                leaders.add(i + 1)
        leaders = sorted(leaders)
        blocks = {}
        for a, b in zip(leaders, leaders[1:] + [n]):
            blocks[a] = (a, b)

        def merge(s1, s2):
            if s1 is None:
                return s2
            lg, vm, sm, hist = s1
            lg2, vm2, sm2, hist2 = s2
            out = []
            for d1, d2 in ((lg, lg2), (vm, vm2), (hist, hist2)):
                d = dict(d1)
                for k, v in d2.items():
                    d[k] = min(d[k], v) if k in d else v
                out.append(d)
            return (out[0], out[1], sm | sm2, out[2])

        byuid = {x.uid: x for x in ins}

        def step(x, st, update):
            lg, vm, sm, hist = st
            changed = False
            if x.kind in ("label", "dir"):
                return st, False
            touched = list(x.src) + list(x.dst) + list(x.need)
            if x.kind == "dma" or x.kind == "vm":
                pass
            wl, wv = None, None
            for r in touched:
                if r in lg:
                    wl = lg[r] if wl is None else min(wl, lg[r])
                if r in sm:
                    wl = 0
                if r in vm:
                    wv = vm[r] if wv is None else min(wv, vm[r])
            if wl is not None and sm:
                wl = 0
            if wl is not None:
                wl = min(wl, 15)
            if wv is not None:
                wv = min(wv, 63)
            if update:
                x.wait_lg, x.wait_vm = wl, wv
            el, ev = wl, wv
            if x.kind == "wait":
                m = re.search(r"lgkmcnt\((\d+)\)", x.text)
                if m:
                    el = int(m.group(1)) if el is None else min(el, int(m.group(1)))
                m = re.search(r"vmcnt\((\d+)\)", x.text)
                if m:
                    ev = int(m.group(1)) if ev is None else min(ev, int(m.group(1)))
            if el is not None:
                if el == 0:
                    lg, sm = {}, frozenset()
                elif not sm:
                    lg = {k: v for k, v in lg.items() if v < el}
            if ev is not None:
                vm = {k: v for k, v in vm.items() if v < ev}
            pre = 1 if (x.kind != "wait" and (wl is not None or wv is not None)) else 0
            if x.kind == "waitpseudo":
                if pre:
                    hist = {k: v + 1 for k, v in hist.items() if v + 1 < MAXH}
                return (lg, vm, sm, hist), changed
            req = 0
            for uid, age in hist.items():
                k = need_states(byuid[uid], x)
                if k > age + pre:
                    req = max(req, k - age - pre)
            if update:
                x.nops = req
            adv = pre + req + 1
            if x.kind == "nop":
                adv += int(x.text.split()[1], 0)
            hist = {k: v + adv for k, v in hist.items() if v + adv < MAXH}
            if x.kind in ("valu", "mfma", "salu", "vm"):
                hist[x.uid] = 0
            if x.kind == "ds":
                lg = {k: v + 1 for k, v in lg.items()}
                for r in x.dst:
                    lg[r] = 0
                if x.tok:
                    lg[x.tok] = 0
            elif x.kind == "smem":
                lg = {k: v + 1 for k, v in lg.items()}
                sm = sm | frozenset(x.dst) | frozenset(["smem"])
            elif x.kind in ("vm", "dma"):
                vm = {k: v + 1 for k, v in vm.items()}
                for r in x.dst:
                    vm[r] = 0
                if x.tok:
                    vm[x.tok] = 0
            return (lg, vm, sm, hist), changed

        for it in range(50):
            instate = {0: ({}, {}, frozenset(), {})}
            work = [0]
            guard = 0
            while work:
                guard += 1
                assert guard < 20000, "no convergence"
                b = work.pop(0)
                a, e = blocks[b]
                st = instate[b]
                for i in range(a, e):
                    st, _ = step(ins[i], st, False)
                for s in succ[e - 1]:
                    old = instate.get(s)
                    new = merge(old, st)
                    if old is None or new != old:
                        instate[s] = new
                        if s not in work:
                            work.append(s)
            anych = False
            for b, (a, e) in blocks.items():
                if b not in instate:
                    continue
                st = instate[b]
                for i in range(a, e):
                    st, ch = step(ins[i], st, True)
                    anych |= ch
            if not anych:
                break
        else:
            raise RuntimeError("finalize did not converge")
        last = {}
        for x in ins:
            if x.expect:
                for r, uid in x.expect.items():
                    assert last.get(r) == uid, f"register {r} was rewritten before: {x.text}"
            for r in x.dst:
                last[r] = x.uid
        out = []
        self.nop_report = 0
        self.nop_sites = []
        self.nwait = 0
        for x in ins:
            w = []
            if x.kind != "wait":
                if x.wait_vm is not None:
                    w.append("vmcnt(%d)" % x.wait_vm)
                if x.wait_lg is not None:
                    w.append("lgkmcnt(%d)" % x.wait_lg)
                if w:
                    out.append("s_waitcnt " + " ".join(w))
                    self.nwait += 1
            if x.nops:
                k = x.nops
                self.nop_report += k
                self.nop_sites.append((len(out), k, x.text))
                while k > 0:
                    out.append("s_nop %d" % (min(k, 16) - 1))
                    k -= 16
            if x.kind == "waitpseudo":
                continue
            out.append(x.text)
        return "\n".join(out) + "\n"


def interleave(mfmas, gaps):
    out = []
    for f in gaps.get(-1, []):
        out.append(f)
    for i, m in enumerate(mfmas):
        out.append(m)
        for f in gaps.get(i, []):
            out.append(f)
    extra = sorted(k for k in gaps if k >= len(mfmas))
    for k in extra:
        out += gaps[k]
    return out


class Gaps:
    def __init__(self, n, cap=2):
        self.n = n
        self.g = {}
        self.used = [0] * n
        self.cap = cap
        self.over = 0

    @staticmethod
    def cost(x):
        t = x.text if isinstance(x, Ins) else x
        op = t.split()[0]
        if op == "WAIT":
            return 1
        if any(op.startswith(y) for y in TRANS):
            return 2
        return 1

    def put(self, i, x, front=False):
        lst = self.g.setdefault(i, [])
        if front:
            lst.insert(0, x)
        else:
            lst.append(x)
        if 0 <= i < self.n:
            self.used[i] += self.cost(x)

    def place(self, x, lo, hi=None):
        hi = self.n - 1 if hi is None else min(hi, self.n - 1)
        c = self.cost(x)
        for i in range(max(lo, 0), hi + 1):
            if self.used[i] + c <= self.cap:
                self.put(i, x)
                return i
        if lo > hi:
            self.put(self.n, x)
            self.over += c
            return self.n
        i = min(range(max(lo, 0), hi + 1), key=lambda j: self.used[j])
        self.put(i, x)
        self.over += c
        return i

    def stream(self, xs, lo, hi=None, spread=False):
        hi = self.n - 1 if hi is None else hi
        pos = lo
        m = len(xs)
        for k, x in enumerate(xs):
            want = pos
            if spread:
                want = max(pos, lo + (k * (hi - lo + 1)) // max(m, 1))
            c = self.cost(x)
            i = want
            while i <= hi and self.used[i] + c > self.cap:
                i += 1
            if i > hi:
                i = max(pos, hi) if pos <= self.n else self.n
                self.over += c
            self.put(i, x)
            pos = i
        return pos


def bind(group):
    last = {}
    for x in group:
        e = {r: last[r] for r in x.src if r in last}
        if e:
            x.expect = e
        for r in x.dst:
            last[r] = x.uid
    return group
```

```python
from asmgen import Prog, Ins, Gaps, interleave, bind

KB = 1024
MB = 1024 * 1024
WS_XN = 0
WS_XN_SZ = 2 * MB
WS_KV = 2 * MB
WS_KV_SZ = 32 * MB
WS_CTX = 34 * MB
WS_CTX_SZ = 16 * MB
WS_H = 50 * MB
H_TILES = 88
WS_H_SZ = 128 * H_TILES * 512
WS_PART = 56 * MB
WS_PART_SZ = 16 * MB
WS_FLAG = 72 * MB
WS_FLAG_SZ = 64 * KB
WS_STAMP = 76 * MB

QK_SCALE = '0x3e0293ee'
ARG = dict(x=0, ckv=8, wq=16, wuk=24, wuv=32, wo=40, bx=48, wg=56, wu=64, wd=72, out=80, dbg=88, ws=96)


def vr(b, n=4):
    return f"v[{b}:{b + n - 1}]" if n > 1 else f"v{b}"


def ar(b, n=4):
    return f"a[{b}:{b + n - 1}]" if n > 1 else f"a{b}"


def sr(b, n=4):
    return f"s[{b}:{b + n - 1}]" if n > 1 else f"s{b}"


def mfma(d, a, b, c):
    return Ins(f"v_mfma_f32_16x16x32_bf16 {d}, {a}, {b}, {c}")


def srd(p, dst, ptr, size, off=0):
    if off:
        p.I(f"s_add_u32 s{dst}, s{ptr}, {hex(off)}\ns_addc_u32 s{dst + 1}, s{ptr + 1}, 0")
    else:
        p.I(f"s_mov_b32 s{dst}, s{ptr}\ns_mov_b32 s{dst + 1}, s{ptr + 1}")
    p.I(f"s_mov_b32 s{dst + 2}, {hex(size)}\ns_mov_b32 s{dst + 3}, 0x20000")


def kd(name, vgpr=512, sgpr=96, accum=256):
    return f""".section .rodata,"a"
.p2align 6
.amdhsa_kernel {name}
  .amdhsa_next_free_vgpr {vgpr}
  .amdhsa_next_free_sgpr {sgpr}
  .amdhsa_accum_offset {accum}
  .amdhsa_group_segment_fixed_size 0
  .amdhsa_kernarg_size 104
  .amdhsa_user_sgpr_count 2
  .amdhsa_user_sgpr_kernarg_segment_ptr 1
  .amdhsa_system_sgpr_workgroup_id_x 1
  .amdhsa_float_denorm_mode_32 3
.end_amdhsa_kernel
.text
"""


def head(name):
    return f".globl {name}\n.p2align 8\n.type {name},@function\n{name}:\n"


def wave_id(p, sdst, vtmp):
    p.I(f"v_lshrrev_b32 v{vtmp}, 6, v0\nv_readfirstlane_b32 s{sdst}, v{vtmp}")


DBG_MODE = {}


def stamp(p, idx, on, s0=84):
    if on == "dbg":
        k, slots = DBG_MODE["k"], DBG_MODE["slots"]
        if idx not in slots:
            return
        slot, neg = slots[idx]
        p.I(f"s_memrealtime s[{s0}:{s0+1}]\ns_load_dwordx2 s[88:89], s[0:1], 88\ns_waitcnt lgkmcnt(0)")
        if neg:
            p.I(f"s_not_b32 s{s0}, s{s0}")
        p.I(f"s_add_u32 s88, s88, {512 * (DBG_MODE['n'] - 1 - k)}\ns_addc_u32 s89, s89, 0\ns_mov_b32 s90, 64\ns_mov_b32 s91, 0x20000")
        p.I(f"v_readfirstlane_b32 s92, v0\ns_and_b32 s93, s2, 0xf8\ns_or_b32 s92, s92, s93\ns_cmp_eq_u32 s92, 0\ns_cselect_b32 s92, {4 * slot}, 0x1000")
        p.I(f"v_mov_b32 v{STAMP_V}, s{s0}\nv_mov_b32 v6, s92\ns_mov_b64 s[92:93], exec\ns_mov_b64 exec, 1")
        p.I(f"buffer_atomic_umax v{STAMP_V}, v6, s[88:91], 0 offen\ns_mov_b64 exec, s[92:93]")
        return
    if on:
        p.I(f"s_memrealtime s[{s0}:{s0+1}]\ns_memtime s[{s0+2}:{s0+3}]\ns_waitcnt lgkmcnt(0)")
        p.I(f"v_writelane_b32 v{STAMP_V}, s{s0}, {2*idx}\nv_writelane_b32 v{STAMP_V}, s{s0+2}, {2*idx+1}")


STAMP_V = 7


def stamp_flush(p, on, kidx, srd_tmp, ws_ptr, wave_s, s0=84):
    if on and on != "dbg":
        srd(p, srd_tmp, ws_ptr, 1 * MB, WS_STAMP + kidx * 256 * KB)
        p.I(f"s_lshl_b32 s{s0}, s2, 2\ns_add_u32 s{s0}, s{s0}, s{wave_s}\ns_lshl_b32 s{s0}, s{s0}, 8")
        p.I(f"v_and_b32 v6, 63, v0\nv_lshlrev_b32 v6, 2, v6")
        p.I(f"buffer_store_dword v{STAMP_V}, v6, {sr(srd_tmp)}, s{s0} offen")


def tick(idx, s0=84):
    return Ins(f"s_memtime s[{TICK0 + 2 * idx}:{TICK0 + 2 * idx + 1}]")


TICK0 = 52


def tick_flush(p, n, first):
    p.I("s_waitcnt lgkmcnt(0)")
    for i in range(n):
        p.I(f"v_writelane_b32 v{STAMP_V}, s{TICK0 + 2 * i}, {first + i}")
```

```python
import sys, importlib
from common import *
HDR = open("parallel_sum__compressed_kv_cla__geglu_ffn__prompt.s.ref").read().split("; Override launch geometry")[0]
def build(kernels, stamps=False, **kw):
    launches, bodies = [], []
    for k in kernels:
        m = importlib.import_module(k)
        if stamps == "dbg":
            import common
            common.DBG_MODE["k"] = len(bodies); common.DBG_MODE["n"] = len(kernels)
            common.DBG_MODE["slots"] = {"k1": {0: (0, 1), 1: (1, 0), 2: (2, 0), 3: (3, 0)}, "k2": {0: (4, 1), 1: (5, 0), 2: (6, 0), 4: (7, 0), 5: (8, 0), 6: (9, 0)},
                                        "k3": {0: (10, 1), 1: (11, 0), 2: (12, 0), 3: (13, 0)}}[k]
        t, info = m.build(stamps=stamps, **kw.get(k, {}))
        launches.append(f"; @launch kernel={k}_kernel grid=(256,1,1) block=(256,1,1) lds=163840")
        bodies.append(t)
        print(k, "nops", info["nops"], "over", info["over"], "waits", info["nwait"], "bytes", len(t), file=sys.stderr)
    return HDR + "\n".join(launches) + '\n.amdgcn_target "amdgcn-amd-amdhsa--gfx950"\n.text\n' + "".join(bodies)
if __name__ == "__main__":
    out = sys.argv[1]
    stamps = "dbg" if "--dbg" in sys.argv else "--stamps" in sys.argv
    ks = [a for a in sys.argv[2:] if not a.startswith("--")]
    kw = {}
    for a in sys.argv[2:]:
        if a.startswith("--opt:"):
            k, o = a[6:].split(".")
            name, _, val = o.partition("=")
            kw.setdefault(k, {})[name] = eval(val) if val else True
    open(out, "w").write(build(ks, stamps, **kw))
```

```python
import re

TRANS = ("v_exp_f32", "v_log_f32", "v_rcp_f32", "v_rsq_f32", "v_sqrt_f32", "v_sin_f32", "v_cos_f32")
MAXH = 24


def regs_of(tok):
    tok = tok.strip()
    neg = tok.lstrip("-")
    if neg.startswith("abs(") and neg.endswith(")"):
        neg = neg[4:-1]
    if neg.startswith("|") and neg.endswith("|"):
        neg = neg[1:-1]
    m = re.fullmatch(r"([vas])(\d+)", neg)
    if m:
        return [m.group(1) + m.group(2)]
    m = re.fullmatch(r"([vas])\[(\d+):(\d+)\]", neg)
    if m:
        return [m.group(1) + str(i) for i in range(int(m.group(2)), int(m.group(3)) + 1)]
    if neg in ("vcc", "exec"):
        return [neg + "_lo", neg + "_hi"]
    if neg in ("m0", "vcc_lo", "vcc_hi", "exec_lo", "exec_hi"):
        return [neg]
    return []


class Ins:
    __slots__ = ("text", "op", "kind", "dst", "src", "srcC", "srcAB", "tok", "need", "wait_vm", "wait_lg", "nops",
                 "label", "target", "cmt", "uid", "data", "passes", "soft", "expect")
    _uid = 0

    def __init__(self, text, tok=None, need=None):
        Ins._uid += 1
        self.uid = Ins._uid
        self.text = text
        self.tok = tok
        self.need = list(need) if need else []
        self.wait_vm = None
        self.wait_lg = None
        self.nops = 0
        self.label = None
        self.target = None
        self.srcC = []
        self.srcAB = []
        self.data = []
        self.passes = 0
        self.soft = False
        self.expect = None
        self.parse()

    def parse(self):
        t = self.text.strip()
        self.dst, self.src = [], []
        if t.endswith(":"):
            self.op, self.kind, self.label = "label", "label", t[:-1]
            return
        if t.startswith(".") or t == "":
            self.op, self.kind = "dir", "dir"
            return
        parts = t.split(None, 1)
        op = parts[0]
        self.op = op
        rest = parts[1] if len(parts) > 1 else ""
        if op == "WAIT":
            self.kind = "waitpseudo"
            for x in rest.split(","):
                x = x.strip()
                if x:
                    r = regs_of(x)
                    if r:
                        self.src += r
                    else:
                        self.need.append(x)
            return
        ops, cur, depth = [], "", 0
        for ch in rest:
            if ch in "[(":
                depth += 1
            if ch in "])":
                depth -= 1
            if ch == "," and depth == 0:
                ops.append(cur.strip())
                cur = ""
            else:
                cur += ch
        if cur.strip():
            ops.append(cur.strip())
        mods = ""
        if ops:
            sp = ops[-1].split(None, 1)
            if len(sp) > 1 and not op.startswith("s_waitcnt"):
                ops[-1], mods = sp[0], sp[1]
        R = [regs_of(o) for o in ops]
        if op.startswith("v_mfma"):
            self.kind = "mfma"
            self.dst = R[0]
            self.srcAB = R[1] + R[2]
            self.srcC = R[3]
            self.src = self.srcAB + self.srcC
            self.passes = 8 if "32x32" in op else 4
        elif op.startswith("ds_read") or op.startswith("ds_bpermute") or op.startswith("ds_swizzle"):
            self.kind = "ds"
            self.dst = R[0]
            self.src = sum(R[1:], [])
        elif op.startswith("ds_write") or op.startswith("ds_add"):
            self.kind = "ds"
            self.src = sum(R, [])
            self.data = sum(R[1:], [])
        elif op.startswith("buffer_load") or op.startswith("global_load"):
            self.kind = "vm"
            if " lds" in " " + mods or "_lds_" in op:
                self.src = sum(R, []) + ["m0"]
                self.kind = "dma"
            else:
                self.dst = R[0]
                self.src = sum(R[1:], [])
        elif op.startswith("buffer_store") or op.startswith("global_store"):
            self.kind = "vm"
            self.src = sum(R, [])
            self.data = R[0] if op.startswith("buffer") else R[1]
        elif op.startswith("buffer_atomic") or op.startswith("global_atomic"):
            self.kind = "vm"
            self.src = sum(R, [])
            if "sc0" in mods:
                self.dst = R[0]
        elif op in ("buffer_wbl2", "buffer_inv"):
            self.kind = "vm"
        elif op.startswith("s_load") or op in ("s_memtime", "s_memrealtime"):
            self.kind = "smem"
            self.dst = R[0]
            self.src = sum(R[1:], [])
        elif op == "s_waitcnt":
            self.kind = "wait"
        elif op == "s_barrier":
            self.kind = "barrier"
        elif op == "s_nop":
            self.kind = "nop"
        elif op in ("s_endpgm",):
            self.kind = "end"
        elif op in ("s_setprio", "s_sleep"):
            self.kind = "salu"
        elif op.startswith("s_cbranch") or op == "s_branch":
            self.kind = "branch"
            self.target = ops[0]
            if "vcc" in op:
                self.src = ["vcc_lo", "vcc_hi"]
            if "exec" in op:
                self.src = ["exec_lo", "exec_hi"]
        elif op == "s_getpc_b64":
            self.kind = "salu"
            self.dst = list(R[0])
        elif op.startswith("s_cmp") or op.startswith("s_bitcmp"):
            self.kind = "salu"
            self.src = sum(R, [])
        elif op.startswith("s_"):
            self.kind = "salu"
            self.dst = list(R[0])
            self.src = sum(R[1:], [])
            if "saveexec" in op:
                self.dst += ["exec_lo", "exec_hi"]
                self.src += ["exec_lo", "exec_hi"]
            if op in ("s_addk_i32", "s_mulk_i32", "s_cmov_b32", "s_bitset1_b32", "s_bitset0_b32"):
                self.src += R[0]
        elif op.startswith("v_"):
            self.kind = "valu"
            if op.startswith("v_permlane") and "swap" in op:
                self.dst = R[0] + R[1]
                self.src = R[0] + R[1]
            elif op.startswith("v_cmp"):
                self.dst = R[0]
                self.src = sum(R[1:], [])
            elif op.startswith("v_add_co") or op.startswith("v_sub_co") or op.startswith("v_addc_co") or op.startswith("v_subb_co"):
                self.dst = R[0] + R[1]
                self.src = sum(R[2:], [])
            else:
                self.dst = R[0]
                self.src = sum(R[1:], [])
                if op.startswith("v_fmac") or op.startswith("v_pk_fmac") or op.startswith("v_dot2c") or op.startswith("v_writelane") or "_dpp" in op:
                    self.src = self.src + R[0]
        else:
            raise ValueError("unknown op " + t)
        if self.kind in ("salu", "branch"):
            if op.startswith(("s_addc", "s_subb", "s_cselect", "s_cbranch_scc", "s_cmov")):
                self.src.append("scc")
            if self.kind == "salu" and not op.startswith(("s_mov", "s_cselect", "s_mul", "s_setprio", "s_sleep", "s_cmov", "s_bitset", "s_getpc")):
                self.dst.append("scc")
        self.src = list(dict.fromkeys(self.src))

    @property
    def is_dpp(self):
        return "_dpp" in self.op

    @property
    def is_trans(self):
        return any(self.op.startswith(x) for x in TRANS)


def need_states(p, c):
    n = 0
    pd = set(p.dst)
    if p.kind == "valu":
        vg = {r for r in pd if r[0] in "va" and not r.startswith("vcc")}
        sg = pd - vg
        if vg:
            if c.kind == "mfma" and vg & set(c.src):
                n = max(n, 2)
            if c.kind == "valu":
                hit = vg & set(c.src)
                if hit:
                    if c.op.startswith("v_permlane") or c.is_dpp:
                        n = max(n, 2)
                    if c.op.startswith("v_readlane") or c.op.startswith("v_readfirstlane"):
                        n = max(n, 1)
                    if p.is_trans and not c.is_trans:
                        n = max(n, 1)
            if p.is_trans and c.kind in ("vm", "ds", "dma") and vg & set(c.src):
                n = max(n, 1)
        if sg:
            hit = sg & set(c.src)
            if hit:
                if c.kind in ("vm", "dma"):
                    n = max(n, 5)
                elif c.kind == "valu":
                    n = max(n, 4 if ("lane" in c.op) else 2)
                elif c.kind in ("salu", "branch"):
                    n = max(n, 0)
    elif p.kind == "mfma":
        big = p.passes == 8
        if c.kind == "mfma":
            if pd & set(c.srcAB):
                n = max(n, 12 if big else 8)
            if pd & set(c.srcC):
                if not (c.srcC == p.dst and c.passes == p.passes):
                    n = max(n, 10 if big else 6)
        else:
            if pd & (set(c.src) | set(c.dst)):
                n = max(n, 12 if big else 8)
            if c.kind == "valu" and set(p.srcC) & set(c.dst):
                n = max(n, 7 if big else 3)
    elif p.kind == "salu":
        if "m0" in pd and c.kind == "dma":
            n = max(n, 1)
    elif p.kind in ("vm",):
        if len(p.data) >= 3 and set(p.data) & set(c.dst):
            n = max(n, 2 if c.kind == "valu" else 1)
    return n


class Prog:
    def __init__(self):
        self.ins = []
        self.nop_report = 0

    def I(self, text, tok=None, need=None):
        for line in text.split("\n"):
            line = line.strip()
            if not line:
                continue
            self.ins.append(Ins(line, tok, need))
        return self

    def add(self, x):
        if isinstance(x, Ins):
            self.ins.append(x)
        elif isinstance(x, str):
            self.I(x)
        else:
            for y in x:
                self.add(y)

    def label(self, name):
        self.I(name + ":")

    def finalize(self):
        ins = self.ins
        n = len(ins)
        labels = {x.label: i for i, x in enumerate(ins) if x.kind == "label"}
        succ = []
        for i, x in enumerate(ins):
            s = []
            if x.kind == "end":
                pass
            elif x.kind == "branch":
                s.append(labels[x.target])
                if x.op != "s_branch":
                    s.append(i + 1)
            else:
                if i + 1 < n:
                    s.append(i + 1)
            succ.append(s)
        leaders = {0}
        for i, x in enumerate(ins):
            if x.kind == "label":
                leaders.add(i)
            if x.kind in ("branch", "end") and i + 1 < n:
                leaders.add(i + 1)
        leaders = sorted(leaders)
        blocks = {}
        for a, b in zip(leaders, leaders[1:] + [n]):
            blocks[a] = (a, b)

        def merge(s1, s2):
            if s1 is None:
                return s2
            lg, vm, sm, hist = s1
            lg2, vm2, sm2, hist2 = s2
            out = []
            for d1, d2 in ((lg, lg2), (vm, vm2), (hist, hist2)):
                d = dict(d1)
                for k, v in d2.items():
                    d[k] = min(d[k], v) if k in d else v
                out.append(d)
            return (out[0], out[1], sm | sm2, out[2])

        byuid = {x.uid: x for x in ins}

        def step(x, st, update):
            lg, vm, sm, hist = st
            changed = False
            if x.kind in ("label", "dir"):
                return st, False
            touched = list(x.src) + list(x.dst) + list(x.need)
            if x.kind == "dma" or x.kind == "vm":
                pass
            wl, wv = None, None
            for r in touched:
                if r in lg:
                    wl = lg[r] if wl is None else min(wl, lg[r])
                if r in sm:
                    wl = 0
                if r in vm:
                    wv = vm[r] if wv is None else min(wv, vm[r])
            if wl is not None and sm:
                wl = 0
            if wl is not None:
                wl = min(wl, 15)
            if wv is not None:
                wv = min(wv, 63)
            if update:
                x.wait_lg, x.wait_vm = wl, wv
            el, ev = wl, wv
            if x.kind == "wait":
                m = re.search(r"lgkmcnt\((\d+)\)", x.text)
                if m:
                    el = int(m.group(1)) if el is None else min(el, int(m.group(1)))
                m = re.search(r"vmcnt\((\d+)\)", x.text)
                if m:
                    ev = int(m.group(1)) if ev is None else min(ev, int(m.group(1)))
            if el is not None:
                if el == 0:
                    lg, sm = {}, frozenset()
                elif not sm:
                    lg = {k: v for k, v in lg.items() if v < el}
            if ev is not None:
                vm = {k: v for k, v in vm.items() if v < ev}
            pre = 1 if (x.kind != "wait" and (wl is not None or wv is not None)) else 0
            if x.kind == "waitpseudo":
                if pre:
                    hist = {k: v + 1 for k, v in hist.items() if v + 1 < MAXH}
                return (lg, vm, sm, hist), changed
            req = 0
            for uid, age in hist.items():
                k = need_states(byuid[uid], x)
                if k > age + pre:
                    req = max(req, k - age - pre)
            if update:
                x.nops = req
            adv = pre + req + 1
            if x.kind == "nop":
                adv += int(x.text.split()[1], 0)
            hist = {k: v + adv for k, v in hist.items() if v + adv < MAXH}
            if x.kind in ("valu", "mfma", "salu", "vm"):
                hist[x.uid] = 0
            if x.kind == "ds":
                lg = {k: v + 1 for k, v in lg.items()}
                for r in x.dst:
                    lg[r] = 0
                if x.tok:
                    lg[x.tok] = 0
            elif x.kind == "smem":
                lg = {k: v + 1 for k, v in lg.items()}
                sm = sm | frozenset(x.dst) | frozenset(["smem"])
            elif x.kind in ("vm", "dma"):
                vm = {k: v + 1 for k, v in vm.items()}
                for r in x.dst:
                    vm[r] = 0
                if x.tok:
                    vm[x.tok] = 0
            return (lg, vm, sm, hist), changed

        for it in range(50):
            instate = {0: ({}, {}, frozenset(), {})}
            work = [0]
            guard = 0
            while work:
                guard += 1
                assert guard < 20000, "no convergence"
                b = work.pop(0)
                a, e = blocks[b]
                st = instate[b]
                for i in range(a, e):
                    st, _ = step(ins[i], st, False)
                for s in succ[e - 1]:
                    old = instate.get(s)
                    new = merge(old, st)
                    if old is None or new != old:
                        instate[s] = new
                        if s not in work:
                            work.append(s)
            anych = False
            for b, (a, e) in blocks.items():
                if b not in instate:
                    continue
                st = instate[b]
                for i in range(a, e):
                    st, ch = step(ins[i], st, True)
                    anych |= ch
            if not anych:
                break
        else:
            raise RuntimeError("finalize did not converge")
        last = {}
        for x in ins:
            if x.expect:
                for r, uid in x.expect.items():
                    assert last.get(r) == uid, f"register {r} was rewritten before: {x.text}"
            for r in x.dst:
                last[r] = x.uid
        out = []
        self.nop_report = 0
        self.nop_sites = []
        self.nwait = 0
        for x in ins:
            w = []
            if x.kind != "wait":
                if x.wait_vm is not None:
                    w.append("vmcnt(%d)" % x.wait_vm)
                if x.wait_lg is not None:
                    w.append("lgkmcnt(%d)" % x.wait_lg)
                if w:
                    out.append("s_waitcnt " + " ".join(w))
                    self.nwait += 1
            if x.nops:
                k = x.nops
                self.nop_report += k
                self.nop_sites.append((len(out), k, x.text))
                while k > 0:
                    out.append("s_nop %d" % (min(k, 16) - 1))
                    k -= 16
            if x.kind == "waitpseudo":
                continue
            out.append(x.text)
        return "\n".join(out) + "\n"


def interleave(mfmas, gaps):
    out = []
    for f in gaps.get(-1, []):
        out.append(f)
    for i, m in enumerate(mfmas):
        out.append(m)
        for f in gaps.get(i, []):
            out.append(f)
    extra = sorted(k for k in gaps if k >= len(mfmas))
    for k in extra:
        out += gaps[k]
    return out


class Gaps:
    def __init__(self, n, cap=2):
        self.n = n
        self.g = {}
        self.used = [0] * n
        self.cap = cap
        self.over = 0

    @staticmethod
    def cost(x):
        t = x.text if isinstance(x, Ins) else x
        op = t.split()[0]
        if op == "WAIT":
            return 1
        if any(op.startswith(y) for y in TRANS):
            return 2
        return 1

    def put(self, i, x, front=False):
        lst = self.g.setdefault(i, [])
        if front:
            lst.insert(0, x)
        else:
            lst.append(x)
        if 0 <= i < self.n:
            self.used[i] += self.cost(x)

    def place(self, x, lo, hi=None):
        hi = self.n - 1 if hi is None else min(hi, self.n - 1)
        c = self.cost(x)
        for i in range(max(lo, 0), hi + 1):
            if self.used[i] + c <= self.cap:
                self.put(i, x)
                return i
        if lo > hi:
            self.put(self.n, x)
            self.over += c
            return self.n
        i = min(range(max(lo, 0), hi + 1), key=lambda j: self.used[j])
        self.put(i, x)
        self.over += c
        return i

    def stream(self, xs, lo, hi=None, spread=False):
        hi = self.n - 1 if hi is None else hi
        pos = lo
        m = len(xs)
        for k, x in enumerate(xs):
            want = pos
            if spread:
                want = max(pos, lo + (k * (hi - lo + 1)) // max(m, 1))
            c = self.cost(x)
            i = want
            while i <= hi and self.used[i] + c > self.cap:
                i += 1
            if i > hi:
                i = max(pos, hi) if pos <= self.n else self.n
                self.over += c
            self.put(i, x)
            pos = i
        return pos


def bind(group):
    last = {}
    for x in group:
        e = {r: last[r] for r in x.src if r in last}
        if e:
            x.expect = e
        for r in x.dst:
            last[r] = x.uid
    return group
```

```python
import sys, importlib
from common import *
HDR = open("parallel_sum__compressed_kv_cla__geglu_ffn__prompt.s.ref").read().split("; Override launch geometry")[0]
def build(kernels, stamps=False, **kw):
    launches, bodies = [], []
    for k in kernels:
        m = importlib.import_module(k)
        if stamps == "dbg":
            import common
            common.DBG_MODE["k"] = len(bodies); common.DBG_MODE["n"] = len(kernels)
            common.DBG_MODE["slots"] = {"k1": {0: (0, 1), 1: (1, 0), 2: (2, 0), 3: (3, 0)}, "k2": {0: (4, 1), 1: (5, 0), 2: (6, 0), 4: (7, 0), 5: (8, 0), 6: (9, 0)},
                                        "k3": {0: (10, 1), 1: (11, 0), 2: (12, 0), 3: (13, 0)}}[k]
        t, info = m.build(stamps=stamps, **kw.get(k, {}))
        launches.append(f"; @launch kernel={k}_kernel grid=(256,1,1) block=(256,1,1) lds=163840")
        bodies.append(t)
        print(k, "nops", info["nops"], "over", info["over"], "waits", info["nwait"], "bytes", len(t), file=sys.stderr)
    DOC = """; One persistent launch, 256 workgroups of 4 waves (one workgroup per CU, one wave per SIMD, 512 registers per wave).
"""
    if kw.get("single"):
        name = "parallel_sum__compressed_kv_cla__geglu_ffn__prompt_kernel"
        return (HDR + DOC + "; @launch grid=(256,1,1) block=(256,1,1) lds=163840" + '\n.amdgcn_target "amdgcn-amd-amdhsa--gfx950"\n.text\n' + "".join(bodies)).replace("kf_kernel", name)
    return HDR + "\n".join(launches) + '\n.amdgcn_target "amdgcn-amd-amdhsa--gfx950"\n.text\n' + "".join(bodies)
if __name__ == "__main__":
    out = sys.argv[1]
    stamps = "dbg" if "--dbg" in sys.argv else "--stamps" in sys.argv
    ks = [a for a in sys.argv[2:] if not a.startswith("--")]
    kw = {}
    for a in sys.argv[2:]:
        if a.startswith("--opt:"):
            k, o = a[6:].split(".", 1)
            name, _, val = o.partition("=")
            kw.setdefault(k, {})[name] = eval(val) if val else True
    if "--single" in sys.argv:
        kw["single"] = True
    open(out, "w").write(build(ks, stamps, **kw))
```

```python
import sys
def gen(shape="32", n_loop=200, nop=0, zero=False, ldsr=0, valu=0, exps=0, acc=False, grid=256, ab_agpr=False, nacc=8):
    o = []
    p = o.append
    p(f"; @launch kernel=k_kernel grid=({grid},1,1) block=(256,1,1) lds=131072")
    p('.amdgcn_target "amdgcn-amd-amdhsa--gfx950"')
    p(".text\n.globl k_kernel\n.p2align 8\n.type k_kernel,@function\nk_kernel:")
    p(f"s_cmp_ge_u32 s2, {grid}\ns_cbranch_scc1 L_end")
    p("s_load_dwordx2 s[4:5], s[0:1], 8")
    p("s_load_dwordx2 s[6:7], s[0:1], 96")
    p("s_memrealtime s[20:21]\ns_memtime s[22:23]")
    p("s_waitcnt lgkmcnt(0)")
    p("s_mov_b32 s8, s4\ns_mov_b32 s9, s5\ns_mov_b32 s10, 0x200000\ns_mov_b32 s11, 0x20000")
    p("s_mov_b32 s12, s6\ns_mov_b32 s13, s7\ns_mov_b32 s14, 0x1000000\ns_mov_b32 s15, 0x20000")
    p("v_lshlrev_b32 v1, 4, v0")
    p("s_and_b32 s3, s2, 15\ns_lshl_b32 s3, s3, 16")
    for i in range(16):
        p(f"s_add_u32 s16, s3, {i*4096}")
        p(f"buffer_load_dwordx4 v[{4+4*i}:{7+4*i}], v1, s[8:11], s16 offen")
    p("s_waitcnt vmcnt(0)")
    if zero:
        for i in range(64): p(f"v_mov_b32 v{4+i}, 0")
    for i in range(16):
        p(f"ds_write_b128 v1, v[{4+4*i}:{7+4*i}] offset:{i*4096}")
    for i in range(64):
        p(f"v_accvgpr_write_b32 a{128+i}, v{4+i}")
    p("s_waitcnt lgkmcnt(0)\ns_barrier")
    p("v_and_b32 v2, 63, v0\nv_lshlrev_b32 v2, 4, v2")
    R = "a" if acc else "v"
    for i in range(128):
        if acc: p(f"v_accvgpr_write_b32 a{i}, 0")
        else: p(f"v_mov_b32 v{128+i}, 0")
    for i in range(16): p(f"v_mov_b32 v{72+i}, 0.5")
    p("s_memrealtime s[24:25]\ns_memtime s[26:27]")
    p("s_waitcnt lgkmcnt(0)")
    p(f"s_mov_b32 s17, {n_loop}")
    p(".p2align 6")
    p("L_loop:")
    base = 0 if acc else 128
    nm = 64 if shape == "32" else 128
    lcount = 0; vcount = 0; ecount = 0
    for i in range(nm):
        ai = (i % 16); bi = ((i*3+5 + i//16) % 16)
        if ab_agpr:
            A = f"a[{128+4*ai}:{128+4*ai+3}]"; B = f"a[{128+4*bi}:{128+4*bi+3}]"
        else:
            A = f"v[{4+4*ai}:{4+4*ai+3}]"; B = f"v[{4+4*bi}:{4+4*bi+3}]"
        if shape == "32":
            d = base + 16*(i % nacc)
            p(f"v_mfma_f32_32x32x16_bf16 {R}[{d}:{d+15}], {A}, {B}, {R}[{d}:{d+15}]")
            scale = 1.0
        else:
            d = base + 4*(i % (4*nacc))
            p(f"v_mfma_f32_16x16x32_bf16 {R}[{d}:{d+3}], {A}, {B}, {R}[{d}:{d+3}]")
            scale = 0.5
        while lcount < (i+1)*scale*ldsr:
            t = (ai + 8) % 16
            dst = f"a[{128+4*t}:{128+4*t+3}]" if ab_agpr else f"v[{4+4*t}:{4+4*t+3}]"
            p(f"ds_read_b128 {dst}, v2 offset:{(int(lcount)*1024*5) % 65536}")
            lcount += 1
        while ecount < (i+1)*scale*exps:
            p(f"v_exp_f32 v{88+int(ecount)%16}, v{4+ (int(ecount)*7)%64 if not ab_agpr else 72+int(ecount)%16}")
            ecount += 1
        while vcount < (i+1)*scale*valu:
            p(f"v_add_f32 v{104+int(vcount)%8}, v{88+(int(vcount)+8)%16}, v{104+int(vcount)%8}")
            vcount += 1
        if nop and (shape == "32" or i % 2 == 1):
            n = nop
            while n > 0:
                p(f"s_nop {min(n,16)-1}"); n -= 16
        if ldsr and i % 8 == 7: p("s_waitcnt lgkmcnt(4)")
    p("s_sub_u32 s17, s17, 1\ns_cmp_lg_u32 s17, 0\ns_cbranch_scc1 L_loop")
    p("s_nop 15\ns_nop 15")
    p("s_memrealtime s[28:29]\ns_memtime s[30:31]")
    p("s_waitcnt lgkmcnt(0)")
    for i in range(12):
        p(f"v_mov_b32 v{4+i}, s{20+i}")
    p("s_lshl_b32 s3, s2, 6")
    p("v_mov_b32 v3, s3")
    p("v_cmp_eq_u32 vcc, 0, v0\ns_and_saveexec_b64 s[32:33], vcc\ns_cbranch_execz L_end")
    p("buffer_store_dwordx4 v[4:7], v3, s[12:15], 0 offen")
    p("buffer_store_dwordx4 v[8:11], v3, s[12:15], 0 offen offset:16")
    p("buffer_store_dwordx4 v[12:15], v3, s[12:15], 0 offen offset:32")
    p("s_waitcnt vmcnt(0)")
    p("L_end:\ns_endpgm")
    p('.section .rodata,"a"\n.p2align 6\n.amdhsa_kernel k_kernel')
    p(".amdhsa_next_free_vgpr 512\n.amdhsa_next_free_sgpr 64\n.amdhsa_accum_offset 256\n.amdhsa_group_segment_fixed_size 0\n.amdhsa_kernarg_size 104\n.amdhsa_user_sgpr_count 2\n.amdhsa_user_sgpr_kernarg_segment_ptr 1\n.amdhsa_system_sgpr_workgroup_id_x 1\n.end_amdhsa_kernel")
    return "\n".join(o) + "\n"

configs = {
 "p32": dict(shape="32"),
 "p16": dict(shape="16"),
 "p32z": dict(shape="32", zero=True),
 "p32acc": dict(shape="32", acc=True, ab_agpr=True),
 "p16acc": dict(shape="16", acc=True, ab_agpr=True),
 "p32n8": dict(shape="32", nop=10),
 "p32n16": dict(shape="32", nop=14),
 "p32n32": dict(shape="32", nop=16),
 "p32g128": dict(shape="32", grid=128),
 "p32l05": dict(shape="32", ldsr=0.5),
 "p16l05": dict(shape="16", ldsr=0.5),
 "p32l1": dict(shape="32", ldsr=1),
 "p16l1": dict(shape="16", ldsr=1),
 "p32att": dict(shape="32", ldsr=0.5, exps=1, valu=1.5),
 "p16att": dict(shape="16", ldsr=0.5, exps=1, valu=1.5),
 "p32att1": dict(shape="32", ldsr=1, exps=1, valu=1.5),
 "p16att1": dict(shape="16", ldsr=1, exps=1, valu=1.5),
 "p32a1": dict(shape="32", nacc=1),
}
if __name__ == "__main__":
    for k, c in configs.items():
        open(f"u_{k}.s", "w").write(gen(n_loop=40, **c))
    print(" ".join(f"u_{k}.s" for k in configs))
```

```python
import gen_mfma_ub2 as g
def mk(chain, cfirst=False):
    t = g.gen(shape="16", n_loop=40, acc=True, ab_agpr=True)
    pre, rest = t.split("L_loop:\n"); body, post = rest.split("s_sub_u32 s17, s17, 1", 1)
    out = []
    for i in range(128):
        if chain == 0:
            A, B, d = (i // 4) % 8, 8 + i % 8, 4 * (i % 32)
        else:
            A, B, d = (i * 3) % 8, 8 + (i * 5 + 1) % 8, 4 * ((i // chain) % 32)
        c = f"a[{d}:{d+3}]"
        if cfirst and chain and i % chain == 0: c = "0"
        out.append(f"v_mfma_f32_16x16x32_bf16 a[{d}:{d+3}], a[{128+4*A}:{128+4*A+3}], a[{128+4*B}:{128+4*B+3}], {c}")
    return pre + "L_loop:\n" + "\n".join(out) + "\ns_sub_u32 s17, s17, 1" + post
cfg = {"fix4": mk(0), "c1": mk(1), "c2": mk(2), "c4": mk(4), "c8": mk(8), "c16": mk(16), "c128": mk(128), "c4z": mk(4, True)}
if __name__ == "__main__":
    for k, t in cfg.items(): open(f"u_{k}.s", "w").write(t)
    print(" ".join(f"u_{k}.s" for k in cfg))
```
